```python
import torch

def _softmax(x, axis=-1):
    return torch.softmax(x, dim=axis)
def _gelu(x):
    return torch.nn.functional.gelu(x, approximate="tanh")
def _silu(x):
    return torch.nn.functional.silu(x)
def _sigmoid(x):
    return torch.sigmoid(x)
def _layernorm(x, axis=-1, eps=1e-5):
    m = x.mean(dim=axis, keepdim=True)
    v = x.var(dim=axis, keepdim=True, unbiased=False)
    return (x - m) / torch.sqrt(v + eps)
def _scatter_add(tgt, idx, src, axis=0):
    return tgt.clone().index_add_(axis, idx, src)
def _segment_sum(src, seg, n):
    out = torch.zeros((n,) + src.shape[1:], dtype=src.dtype)
    return out.index_add_(0, seg, src)
def _pad(x, pw):
    flat = tuple(v for pair in reversed(pw) for v in pair)
    return torch.nn.functional.pad(x, flat)

kernel_name = 'parallel_sum__sliding_block_cached__glu_gated_geglu__decode'

def setup_inputs():

    _w = (lambda a: (lambda t: t.to(torch.bfloat16) if t.is_floating_point() else t)(torch.as_tensor(a)))
    def _A_setup():
        B, Sq, D = 2, 1, 448
        Hq, Hkv, Sk, Dh = 16, 8, 32768, 256
        assert Hq % Hkv == 0, (Hq, Hkv)
        return {
            "x": _w((lambda *s: torch.randn(*s, dtype=torch.bfloat16) * 0.05)(B, Sq, D)),
            "k_cache": _w((lambda *s: torch.randn(*s, dtype=torch.bfloat16) * 1.6)(B, Hkv, Sk, Dh)),
            "v_cache": _w((lambda *s: torch.randn(*s, dtype=torch.bfloat16) * 0.8)(B, Hkv, Sk, Dh)),
            "wq": _w((lambda *s: torch.randn(*s, dtype=torch.bfloat16) * 1.6)(D, Hq * Dh) * (D ** -0.5)),
            "wo": _w((lambda *s: torch.randn(*s, dtype=torch.bfloat16) * 0.8)(Hq * Dh, D) * ((Hq * Dh) ** -0.5)),
        }
    _A_in = _A_setup()

    def _B_setup():
        B, S, Dm, Df = 2, 1, 448, 1792
        return {
            "x": _w((lambda *s: torch.randn(*s, dtype=torch.bfloat16) * 0.05)(B, S, Dm)),
            "w_gate": _w((lambda *s: torch.randn(*s, dtype=torch.bfloat16) * 0.4)(Dm, Df) * (Dm ** -0.5)),
            "w_up": _w((lambda *s: torch.randn(*s, dtype=torch.bfloat16) * 0.4)(Dm, Df) * (Dm ** -0.5)),
            "w_down": _w((lambda *s: torch.randn(*s, dtype=torch.bfloat16) * 0.4)(Df, Dm) * (Df ** -0.5)),
        }
    _B_in = _B_setup()

    return {
        "A_x": _A_in["x"],
        "A_k_cache": _A_in["k_cache"],
        "A_v_cache": _A_in["v_cache"],
        "A_wq": _A_in["wq"],
        "A_wo": _A_in["wo"],
        "B_x": _B_in["x"],
        "B_w_gate": _B_in["w_gate"],
        "B_w_up": _B_in["w_up"],
        "B_w_down": _B_in["w_down"],
    }

def reference(A_x, A_k_cache, A_v_cache, A_wq, A_wo, B_x, B_w_gate, B_w_up, B_w_down):
    def _A_ref(x, k_cache, v_cache, wq, wo):
        B, Sq, D = x.shape
        Hq, Dh = 16, 256
        Hkv, Sk = k_cache.shape[1], k_cache.shape[2]
        W = min(4096, max(256, Sk // 4))
        rep = Hq // Hkv
        q = (lambda x, *d: x.permute(*d))((x @ wq).reshape(B, Sq, Hq, Dh), 0, 2, 1, 3)
        k = (lambda x, n, axis: torch.repeat_interleave(x, n, dim=axis))(k_cache[:, :, Sk - W:, :], rep, axis=1)
        v = (lambda x, n, axis: torch.repeat_interleave(x, n, dim=axis))(v_cache[:, :, Sk - W:, :], rep, axis=1)
        scores = torch.einsum("bhqd,bhkd->bhqk", q, k) * (Dh ** -0.5)
        p = _softmax(scores, axis=-1)
        o = torch.einsum("bhqk,bhkd->bhqd", p, v)
        return (lambda x, *d: x.permute(*d))(o, 0, 2, 1, 3).reshape(B, Sq, Hq * Dh) @ wo

    def _B_ref(x, w_gate, w_up, w_down):
        g = torch.einsum("bsd,df->bsf", x, w_gate)
        u = torch.einsum("bsd,df->bsf", x, w_up)
        h = _gelu(g) * u
        return torch.einsum("bsf,fd->bsd", h, w_down)

    x = A_x
    xn = _layernorm(x, axis=-1)
    return x + _A_ref(xn, A_k_cache, A_v_cache, A_wq, A_wo) + _B_ref(xn, B_w_gate, B_w_up, B_w_down)
```

```python
import sys
KN = "parallel_sum__sliding_block_cached__glu_gated_geglu__decode"

WS_EPOCH = 0
WS_S1 = 0x1000
WS_STATS = 0x40000
WS_HOP1 = 0x80000
WS_HOP2 = 0x200000
WS_SIZE = 0x400000
L_K = 0
L_XN = 0x20000
L_S1R = 0x20E00
L_Q = 0x21E00
L_S = 0x22200
L_P = 0x22600
L_OLD = 0x22E00
L_FIN = 0x24E00
L_CNT = 0x24F00
C_S1, C_Q, C_K, C_S, C_P, C_OLD, C_PUB, C_FIN = 0, 4, 8, 12, 16, 20, 36, 40
LDS_SIZE = 0x25000
SPIN_CAP = 1 << 18

HDR = open(__file__.replace("gen_a.py", "hdr.txt")).read()


class Gen:
    def __init__(self, stamps=False):
        self.L = []
        self.stamps = stamps
        self.uid = 0

    def A(self, s):
        for ln in s.split("\n"):
            ln = ln.strip()
            if ln:
                self.L.append(("" if ln.endswith(":") else "    ") + ln)

    def lab(self, p):
        self.uid += 1
        return f"L_{p}{self.uid}"

    def stamp(self, i):
        if self.stamps:
            self.A(f"s_memrealtime s[{80+2*i}:{81+2*i}]")

    def srd(self, d, lo, hi, size):
        if lo is not None:
            self.A(f"s_mov_b32 s{d}, s{lo}\ns_mov_b32 s{d+1}, s{hi}")
        self.A(f"s_mov_b32 s{d+2}, {size}\ns_mov_b32 s{d+3}, 0x20000")

    def allred32(self, op, v, t):
        for c in ("quad_perm:[1,0,3,2]", "quad_perm:[2,3,0,1]", "row_half_mirror", "row_mirror"):
            self.A("s_nop 1")
            self.A(f"{op}_dpp v{v}, v{v}, v{v} {c} row_mask:0xf bank_mask:0xf")
        self.A(f"v_mov_b32 v{t}, v{v}")
        self.A("s_nop 1")
        self.A(f"v_permlane16_swap_b32 v{v}, v{t}")
        self.A("s_nop 1")
        self.A(f"{op} v{v}, v{v}, v{t}")

    def poll(self, loads, bad, sleep=1):
        lp, dn = self.lab("poll"), self.lab("pdone")
        self.A(f"s_mov_b32 s72, 0")
        self.A(f"{lp}:")
        for (vd, va, so, im) in loads:
            self.A(f"buffer_load_dwordx4 v[{vd}:{vd+3}], v{va}, s[36:39], {so} offen offset:{im} sc1")
        first = True
        for k, (vd, va, so, im) in enumerate(loads):
            self.A(f"s_waitcnt vmcnt({len(loads)-1-k})")
            if first:
                self.A(f"v_xor_b32 v{bad}, s65, v{vd+1}")
                first = False
            else:
                self.A(f"v_bitop3_b32 v{bad}, v{bad}, v{vd+1}, s65 bitop3:0xf6")
            self.A(f"v_bitop3_b32 v{bad}, v{bad}, v{vd+3}, s65 bitop3:0xf6")
        self.A(f"v_cmp_ne_u32 vcc, 0, v{bad}")
        self.A("s_and_b64 exec, exec, vcc")
        self.A(f"s_cbranch_scc0 {dn}")
        self.A(f"s_add_u32 s72, s72, 1\ns_cmp_lt_u32 s72, {SPIN_CAP}")
        if sleep:
            self.A(f"s_sleep {sleep}")
        self.A(f"s_cbranch_scc1 {lp}")
        self.A(f"{dn}:")
        self.A("s_mov_b64 exec, -1")

    def lds_spin(self, vaddr, off, want, vt, sleep=1):
        lp, dn = self.lab("spin"), self.lab("sdone")
        self.A("s_mov_b32 s72, 0")
        self.A(f"{lp}:")
        self.A(f"ds_read_b32 v{vt}, v{vaddr} offset:{off}")
        self.A("s_waitcnt lgkmcnt(0)")
        self.A(f"v_readfirstlane_b32 s73, v{vt}")
        self.A(f"s_cmp_eq_u32 s73, {want}")
        self.A(f"s_cbranch_scc1 {dn}")
        self.A(f"s_add_u32 s72, s72, 1\ns_cmp_lt_u32 s72, {SPIN_CAP*8}")
        if sleep:
            self.A(f"s_sleep {sleep}")
        self.A(f"s_cbranch_scc1 {lp}")
        self.A(f"{dn}:")

    def lds_inc(self, vaddr, off, vone):
        self.A("s_mov_b64 exec, 1")
        self.A(f"ds_add_u32 v{vaddr}, v{vone} offset:{off}")
        self.A("s_mov_b64 exec, -1")

    def lds_inc_rtn(self, vaddr, off, vone, vt, sdst):
        self.A("s_mov_b64 exec, 1")
        self.A(f"ds_add_rtn_u32 v{vt}, v{vaddr}, v{vone} offset:{off}")
        self.A("s_mov_b64 exec, -1")
        self.A("s_waitcnt lgkmcnt(0)")
        self.A(f"v_readfirstlane_b32 s{sdst}, v{vt}")

    def ands(self, a, p):
        for k in range(4):
            self.A(f"v_and_b32 v{a+k}, v{4+k}, v{p}")

    def mfma(self, d, a, b, c=None):
        cs = "0" if c is None else f"v[{c}:{c+3}]"
        self.A(f"v_mfma_f32_16x16x32_bf16 v[{d}:{d+3}], v[{a}:{a+3}], v[{b}:{b+3}], {cs}")

    def masks(self):
        A = self.A
        A("v_and_b32 v1, 15, v0\nv_lshrrev_b32 v2, 4, v0")
        A("v_and_b32 v9, 1, v0\nv_lshlrev_b32 v9, 4, v9\nv_mov_b32 v10, 0xffff\nv_lshlrev_b32 v9, v9, v10")
        for k in range(4):
            m = 0x03030303 << (2 * k)
            A(f"s_mov_b32 s74, {m:#x}\ns_mov_b32 s75, {m:#x}")
            A(f"v_cndmask_b32 v{4+k}, 0, v9, s[74:75]")

    def build(self):
        A = self.A
        A(f"{KN}_kernel:")
        if self.stamps:
            for i in range(82, 102, 2): A(f"s_mov_b64 s[{i}:{i+1}], 0")
        self.stamp(0)
        A("s_cmp_ge_u32 s2, 256\ns_cbranch_scc1 L_end")
        A("s_load_dwordx16 s[4:19], s[0:1], 0\ns_load_dwordx8 s[20:27], s[0:1], 64")
        A("v_lshrrev_b32 v1, 6, v0\nv_and_b32 v0, 63, v0")
        A(f"v_mov_b32 v3, {L_CNT}\nv_mov_b32 v8, 0")
        A("v_readfirstlane_b32 s60, v1")
        A("v_lshl_add_u32 v9, v0, 2, v3")
        A("ds_write_b32 v9, v8")
        A("v_mov_b32 v8, 1")
        A("s_and_b32 s61, s2, 7\ns_lshr_b32 s62, s2, 3\ns_lshr_b32 s63, s62, 4\ns_and_b32 s64, s62, 15")
        A("s_cmp_ge_u32 s60, 4\ns_cbranch_scc1 L_stream")
        A("s_setprio 3")
        A("s_cmp_lt_u32 s62, 16\ns_cbranch_scc0 L_gu")
        A("s_lshr_b32 s66, s62, 1\ns_lshl_b32 s67, s61, 3\ns_add_u32 s66, s66, s67")
        A("s_and_b32 s67, s62, 1")
        A("s_lshl_b32 s71, s66, 1\ns_add_u32 s71, s71, s67")
        A("s_movk_i32 s70, 0x2000\ns_mov_b32 s76, 1")
        A("s_waitcnt lgkmcnt(0)")
        A("s_mov_b32 s44, s10\ns_mov_b32 s45, s11")
        A("s_branch L_dec")
        A("L_gu:")
        A("s_sub_u32 s66, s62, 16\ns_lshl_b32 s66, s66, 3\ns_add_u32 s66, s66, s61")
        A("s_cmp_lt_u32 s66, 112\ns_cselect_b32 s76, 1, 0\ns_min_u32 s66, s66, 111")
        A("s_add_u32 s71, s66, 128")
        A("s_and_b32 s67, s66, 1\ns_lshr_b32 s66, s66, 1")
        A("s_movk_i32 s70, 3584")
        A("s_waitcnt lgkmcnt(0)")
        A("s_cmp_lt_u32 s66, 28\ns_cselect_b32 s44, s16, s18\ns_cselect_b32 s45, s17, s19\ns_cselect_b32 s68, 0, 28")
        A("s_sub_u32 s66, s66, s68")
        A("L_dec:")
        A("s_load_dword s65, s[26:27], 0")
        self.srd(40, 4, 5, 1792)
        A("v_mul_u32_u24 v10, 28, v0")
        A("buffer_load_dwordx4 v[12:15], v10, s[40:43], 0 offen")
        A("buffer_load_dwordx3 v[16:18], v10, s[40:43], 0 offen offset:16")
        A("s_mul_i32 s68, s70, 224\ns_mul_i32 s68, s68, s67\ns_lshl_b32 s69, s66, 7\ns_add_u32 s68, s68, s69")
        A("s_add_u32 s44, s44, s68\ns_addc_u32 s45, s45, 0")
        A("s_mul_i32 s46, s70, 223\ns_add_u32 s46, s46, 128\ns_mul_i32 s46, s46, s76\ns_mov_b32 s47, 0x20000")
        A("s_mul_i32 s68, s60, 56")
        A("v_lshrrev_b32 v11, 3, v0\nv_add_u32 v11, s68, v11")
        A("v_mul_lo_u32 v10, v11, s70")
        A("v_and_b32 v9, 7, v0\nv_lshl_add_u32 v10, v9, 4, v10")
        A("s_lshl_b32 s68, s70, 3\ns_mov_b32 s69, 0")
        for t in range(7):
            A(f"buffer_load_dwordx4 v[{64+4*t}:{67+4*t}], v10, s[44:47], s69 offen nt")
            if t < 6:
                A("s_add_u32 s69, s69, s68")
        A("s_barrier")
        self.stamp(1)
        self.masks()
        self.srd(36, 26, 27, WS_SIZE)
        A("s_waitcnt vmcnt(7)")
        for k in range(7):
            A(f"v_lshlrev_b32 v{20+2*k}, 16, v{12+k}\nv_and_b32 v{21+2*k}, 0xffff0000, v{12+k}")
        A("v_add_f32 v34, v20, v21\nv_add_f32 v35, v22, v23")
        for k in range(24, 34, 2):
            A(f"v_add_f32 v34, v34, v{k}\nv_add_f32 v35, v35, v{k+1}")
        A("v_add_f32 v34, v34, v35")
        self.allred32("v_add_f32", 34, 35)
        A("v_mul_f32 v34, 0x3b124925, v34")
        A("v_sub_f32 v36, v20, v34\nv_sub_f32 v37, v21, v34\nv_mul_f32 v38, v36, v36\nv_mul_f32 v39, v37, v37")
        for k in range(22, 34, 2):
            A(f"v_sub_f32 v36, v{k}, v34\nv_sub_f32 v37, v{k+1}, v34\nv_fmac_f32 v38, v36, v36\nv_fmac_f32 v39, v37, v37")
        A("v_add_f32 v38, v38, v39")
        self.allred32("v_add_f32", 38, 39)
        A("v_mul_f32 v38, 0x3b124925, v38")
        A("v_cvt_pk_bf16_f32 v36, v34, v38")
        A("v_lshlrev_b32 v34, 16, v36\nv_and_b32 v38, 0xffff0000, v36")
        A("v_add_f32 v38, 0x3727c5ac, v38")
        A("v_cvt_pk_bf16_f32 v38, v38, v38\nv_and_b32 v38, 0xffff0000, v38")
        A("v_sqrt_f32 v38, v38\ns_nop 0")
        A("v_cvt_pk_bf16_f32 v38, v38, v38\nv_and_b32 v38, 0xffff0000, v38")
        A("v_rcp_f32 v38, v38")
        for k in range(7):
            A(f"v_sub_f32 v{20+2*k}, v{20+2*k}, v34\nv_sub_f32 v{21+2*k}, v{21+2*k}, v34")
            A(f"v_cvt_pk_bf16_f32 v36, v{20+2*k}, v{21+2*k}")
            A(f"v_lshlrev_b32 v{20+2*k}, 16, v36\nv_and_b32 v{21+2*k}, 0xffff0000, v36")
            A(f"v_mul_f32 v{20+2*k}, v{20+2*k}, v38\nv_mul_f32 v{21+2*k}, v{21+2*k}, v38")
            A(f"v_cvt_pk_bf16_f32 v{20+2*k}, v{20+2*k}, v{20+2*k}\nv_cvt_pk_bf16_f32 v{21+2*k}, v{21+2*k}, v{21+2*k}")
        A(f"v_mul_u32_u24 v9, 56, v0\nv_add_u32 v9, {L_XN}, v9")
        for k in range(7):
            A(f"ds_write_b64 v9, v[{20+2*k}:{21+2*k}] offset:{8*k}")
        A("s_mul_i32 s68, s67, 224")
        A(f"v_add_u32 v9, s68, v11\nv_lshlrev_b32 v9, 2, v9\nv_add_u32 v9, {L_XN}, v9")
        A("s_waitcnt lgkmcnt(0)")
        A("s_add_u32 s65, s65, 1")
        A("s_cmp_eq_u32 s76, 0\ns_cbranch_scc1 L_s1done")
        for t in range(7):
            for b in range(2):
                A(f"ds_read_b32 v{20+2*t+b}, v9 offset:{b*1792 + t*32}")
        A("s_waitcnt lgkmcnt(0)")
        self.ands(40, 20)
        self.ands(44, 21)
        for t in range(7):
            A(f"s_waitcnt vmcnt({6-t})")
            self.mfma(48, 40, 64 + 4 * t, None if t == 0 else 48)
            if t < 6:
                self.ands(40, 20 + 2 * (t + 1))
            else:
                A("s_nop 0")
            self.mfma(52, 44, 64 + 4 * t, None if t == 0 else 52)
            if t < 6:
                self.ands(44, 21 + 2 * (t + 1))
        self.stamp(2)
        A("s_lshl_b32 s68, s60, 10")
        A("v_lshrrev_b32 v9, 5, v0\nv_lshlrev_b32 v9, 9, v9")
        A("v_and_b32 v10, 7, v0\nv_lshl_add_u32 v9, v10, 5, v9")
        A("v_and_b32 v10, 1, v2\nv_lshl_add_u32 v9, v10, 4, v9")
        A(f"v_add_u32 v9, s68, v9\nv_add_u32 v9, {L_S1R}, v9")
        A("s_mov_b32 exec_lo, 0x00ff00ff\ns_mov_b32 exec_hi, 0xff00ff00")
        A("s_nop 1")
        A("ds_write_b128 v9, v[48:51]\nds_write_b128 v9, v[52:55] offset:256")
        self.lds_inc_rtn(3, C_S1, 8, 10, 73)
        A("s_cmp_eq_u32 s73, 3\ns_cbranch_scc0 L_s1done")
        A(f"v_lshlrev_b32 v9, 3, v0\nv_add_u32 v9, {L_S1R}, v9")
        for p in range(8):
            A(f"ds_read_b64 v[{20+2*p}:{21+2*p}], v9 offset:{p*512}")
        A(f"s_lshl_b32 s68, s71, 10\ns_add_u32 s68, s68, {WS_S1}")
        A("v_lshlrev_b32 v10, 4, v0\nv_mov_b32 v41, s65\nv_mov_b32 v43, s65")
        A("s_waitcnt lgkmcnt(0)")
        A("v_add_f32 v40, v20, v22\nv_add_f32 v42, v21, v23")
        for p in range(2, 8):
            A(f"v_add_f32 v40, v40, v{20+2*p}\nv_add_f32 v42, v42, v{21+2*p}")
        A("buffer_store_dwordx4 v[40:43], v10, s[36:39], s68 offen sc1")
        A("L_s1done:")
        self.stamp(3)
        A("s_lshl_b32 s66, s61, 1\ns_add_u32 s66, s66, s63")
        A("s_lshl_b32 s67, s66, 8\ns_lshl_b32 s68, s64, 4\ns_add_u32 s67, s67, s68")
        A("s_mul_i32 s67, s67, 896")
        A("s_add_u32 s48, s12, s67\ns_addc_u32 s49, s13, 0")
        self.srd(48, None, None, 16 * 896)
        A("s_mul_i32 s67, s2, 7168")
        A("s_cmp_lt_u32 s2, 224\ns_cselect_b32 s67, s67, 0\ns_cselect_b32 s54, 7168, 0")
        A("s_add_u32 s52, s20, s67\ns_addc_u32 s53, s21, 0\ns_mov_b32 s55, 0x20000")
        A("s_lshl_b32 s68, s60, 8")
        A("v_lshl_add_u32 v9, v1, 4, s68")
        A("v_cmp_gt_u32 vcc, 896, v9")
        A("v_mul_u32_u24 v10, 3584, v2\nv_add_u32 v10, v10, v9")
        A("v_mul_u32_u24 v11, 1792, v2\nv_add_u32 v11, v11, v9")
        A("v_mov_b32 v9, 0x7fffffff")
        A("v_cndmask_b32 v10, v9, v10, vcc\nv_cndmask_b32 v11, v9, v11, vcc")
        A("s_lshl_b32 s68, s61, 3\ns_lshl_b32 s69, s60, 1\ns_add_u32 s68, s68, s69\ns_lshl_b32 s68, s68, 11")
        A(f"s_lshl_b32 s69, s63, 9\ns_add_u32 s68, s68, s69\ns_add_u32 s68, s68, {WS_S1}")
        A("v_lshrrev_b32 v12, 5, v0\nv_lshlrev_b32 v12, 11, v12\nv_and_b32 v9, 31, v0\nv_lshl_add_u32 v12, v9, 4, v12\nv_add_u32 v12, s68, v12")
        A("s_min_u32 s69, s62, 27")
        A(f"s_lshl_b32 s68, s69, 11\ns_add_u32 s68, s68, {WS_S1 + 128*1024}\ns_lshl_b32 s69, s61, 6\ns_add_u32 s68, s68, s69")
        A("v_bfe_u32 v14, v0, 3, 1")
        A("v_lshlrev_b32 v13, 9, v14\nv_lshl_add_u32 v13, v2, 4, v13\nv_add_u32 v13, s68, v13")
        A(f"s_mov_b32 s77, {56*1024}")
        self.poll([(20, 12, 0, 0), (24, 12, 0, 1024), (28, 13, 0, 0), (32, 13, 0, 1024), (36, 13, "s77", 0), (40, 13, "s77", 1024)], 44)
        self.stamp(4)
        for rg in range(4):
            A(f"buffer_load_dwordx4 v[{96+4*rg}:{99+4*rg}], v10, s[48:51], 0 offen offset:{rg*896} nt")
        for rg in range(2):
            A(f"buffer_load_dwordx4 v[{112+4*rg}:{115+4*rg}], v11, s[52:55], 0 offen offset:{rg*896} nt")
        A("v_add_f32 v20, v20, v24\nv_add_f32 v22, v22, v26\nv_cvt_pk_bf16_f32 v20, v20, v22")
        A(f"s_lshl_b32 s68, s60, 8\ns_add_u32 s68, s68, {L_Q}")
        A("v_lshl_add_u32 v9, v0, 2, s68")
        A("ds_write_b32 v9, v20")
        self.lds_inc(3, C_Q, 8)
        A("v_add_f32 v28, v28, v32\nv_add_f32 v30, v30, v34\nv_add_f32 v36, v36, v40\nv_add_f32 v38, v38, v42")
        A("v_cvt_pk_bf16_f32 v28, v28, v30\nv_cvt_pk_bf16_f32 v36, v36, v38")
        A("v_lshlrev_b32 v29, 16, v28\nv_and_b32 v30, 0xffff0000, v28\nv_lshlrev_b32 v37, 16, v36\nv_and_b32 v38, 0xffff0000, v36")
        A("s_mov_b32 s68, 0x3d372713")
        A("s_mov_b32 s69, 0xc0135761")
        for (g, t) in ((29, 31), (30, 32)):
            A(f"v_mul_f32 v{t}, v{g}, v{g}\nv_mul_f32 v{t}, s68, v{t}\nv_fma_f32 v{t}, v{t}, v{g}, v{g}\nv_mul_f32 v{t}, s69, v{t}")
        A("v_exp_f32 v31, v31\nv_exp_f32 v32, v32\ns_nop 0")
        A("v_add_f32 v31, 1.0, v31\nv_add_f32 v32, 1.0, v32")
        A("v_rcp_f32 v31, v31\nv_rcp_f32 v32, v32\ns_nop 0")
        A("v_mul_f32 v31, v29, v31\nv_mul_f32 v32, v30, v32")
        A("v_cvt_pk_bf16_f32 v31, v31, v32")
        A("v_lshlrev_b32 v29, 16, v31\nv_and_b32 v30, 0xffff0000, v31")
        A("v_mul_f32 v29, v29, v37\nv_mul_f32 v30, v30, v38")
        A("v_cvt_pk_bf16_f32 v124, v29, v29\nv_cvt_pk_bf16_f32 v125, v30, v30")
        A("v_and_b32 v9, 3, v1\nv_xor_b32 v9, v9, v2\nv_lshlrev_b32 v9, 4, v9")
        A("v_lshl_add_u32 v9, v1, 13, v9")
        A("s_lshl_b32 s68, s60, 11\nv_add_u32 v9, s68, v9")
        A("v_lshrrev_b32 v15, 2, v1")
        for t in range(4):
            A(f"v_xor_b32 v{16+t}, {t}, v15\nv_lshl_add_u32 v{16+t}, v{16+t}, 6, v9")
        A(f"v_and_b32 v15, 1, v0\nv_lshlrev_b32 v15, 9, v15\nv_lshl_add_u32 v15, v2, 4, v15\nv_add_u32 v15, {L_Q}, v15")
        self.lds_spin(3, C_Q, 4, 9)
        for t in range(8):
            A(f"ds_read_b128 v[{128+4*t}:{131+4*t}], v15 offset:{t*64}")
        self.lds_spin(3, C_K, 8, 9)
        self.stamp(5)
        accs = [52, 56, 60, 120]
        bufs = [20, 64]
        def kreads(tt):
            for t in range(8):
                A(f"ds_read_b128 v[{bufs[tt&1]+4*t}:{bufs[tt&1]+4*t+3}], v{16+(t&3)} offset:{tt*512 + (t>>2)*256}")
        kreads(0)
        for tt in range(4):
            if tt < 3:
                kreads(tt + 1)
                A("s_waitcnt lgkmcnt(8)")
            else:
                A("s_waitcnt lgkmcnt(0)")
            for t in range(8):
                self.mfma(accs[tt], bufs[tt & 1] + 4 * t, 128 + 4 * t, None if t == 0 else accs[tt])
        A(f"s_lshl_b32 s68, s60, 3\ns_add_u32 s68, s68, {L_S}")
        A("v_and_b32 v9, 1, v0\nv_lshlrev_b32 v9, 9, v9\nv_lshl_add_u32 v9, v2, 7, v9\nv_add_u32 v9, s68, v9")
        A("s_nop 4")
        for i in range(4):
            A(f"v_cvt_pk_bf16_f32 v{20+2*i}, v{52+i}, v{56+i}\nv_cvt_pk_bf16_f32 v{21+2*i}, v{60+i}, v{120+i}")
        A("s_mov_b32 exec_lo, 0x00030003\ns_mov_b32 exec_hi, 0x00030003")
        for i in range(4):
            A(f"ds_write_b64 v9, v[{20+2*i}:{21+2*i}] offset:{i*32}")
        self.lds_inc_rtn(3, C_S, 8, 10, 73)
        A("s_cmp_eq_u32 s73, 3\ns_cbranch_scc0 L_smdone")
        A(f"v_lshlrev_b32 v9, 4, v0\nv_add_u32 v9, {L_S}, v9")
        A("ds_read_b128 v[20:23], v9")
        A(f"v_lshlrev_b32 v9, 5, v0\nv_add_u32 v9, {L_P}, v9")
        A("s_mov_b32 s68, 0x3db8aa3b")
        A("s_waitcnt lgkmcnt(0)")
        for k in range(4):
            A(f"v_lshlrev_b32 v{24+2*k}, 16, v{20+k}\nv_and_b32 v{25+2*k}, 0xffff0000, v{20+k}")
        A("v_max3_f32 v32, v24, v25, v26\nv_max3_f32 v33, v27, v28, v29\nv_max3_f32 v32, v32, v30, v31\nv_max_f32 v32, v32, v33")
        self.allred32("v_max_f32", 32, 33)
        for k in range(8):
            A(f"v_sub_f32 v{24+k}, v{24+k}, v32\nv_mul_f32 v{24+k}, s68, v{24+k}\nv_exp_f32 v{24+k}, v{24+k}")
        A("s_nop 0")
        for k in range(8):
            A(f"v_cvt_pk_bf16_f32 v{40+k}, v{24+k}, v{24+k}")
        A("ds_write_b128 v9, v[40:43]\nds_write_b128 v9, v[44:47] offset:16")
        self.lds_inc(3, C_P, 8)
        A("v_add_f32 v34, v24, v25\nv_add_f32 v35, v26, v27\nv_add_f32 v34, v34, v28\nv_add_f32 v35, v35, v29")
        A("v_add_f32 v34, v34, v30\nv_add_f32 v35, v35, v31\nv_add_f32 v34, v34, v35")
        self.allred32("v_add_f32", 34, 35)
        A("v_mul_f32 v32, s68, v32\nv_mov_b32 v33, s65\nv_mov_b32 v35, s65")
        A("s_lshl_b32 s68, s63, 4\ns_lshl_b32 s69, s61, 1\ns_add_u32 s68, s68, s69\ns_lshl_b32 s68, s68, 4\ns_add_u32 s68, s68, s64")
        A(f"s_lshl_b32 s68, s68, 4\ns_add_u32 s68, s68, {WS_STATS}")
        A("v_lshrrev_b32 v9, 5, v0\nv_lshlrev_b32 v9, 8, v9")
        A("s_mov_b32 exec_lo, 1\ns_mov_b32 exec_hi, 1")
        A("buffer_store_dwordx4 v[32:35], v9, s[36:39], s68 offen sc1")
        A("s_mov_b64 exec, -1")
        A("L_smdone:")
        self.stamp(6)
        self.ands(40, 124)
        self.ands(44, 125)
        A("s_waitcnt vmcnt(0)")
        self.mfma(120, 40, 112, None)
        self.mfma(120, 44, 116, 120)
        A("v_and_b32 v15, 7, v0")
        A(f"s_lshl_b32 s68, s66, 8\ns_add_u32 s68, s68, {WS_STATS}")
        A("v_lshlrev_b32 v12, 12, v14\nv_lshl_add_u32 v12, v15, 5, v12\nv_add_u32 v12, s68, v12")
        self.poll([(20, 12, 0, 0), (24, 12, 0, 16)], 44, sleep=4)
        A("v_max_f32 v28, v20, v24")
        for c in ("quad_perm:[1,0,3,2]", "quad_perm:[2,3,0,1]", "row_half_mirror"):
            A(f"s_nop 1\nv_max_f32_dpp v28, v28, v28 {c} row_mask:0xf bank_mask:0xf")
        A("v_sub_f32 v20, v20, v28\nv_sub_f32 v24, v24, v28\nv_exp_f32 v20, v20\nv_exp_f32 v24, v24\ns_nop 0")
        A("v_mul_f32 v28, v20, v22\nv_fmac_f32 v28, v24, v26")
        for c in ("quad_perm:[1,0,3,2]", "quad_perm:[2,3,0,1]", "row_half_mirror"):
            A(f"s_nop 1\nv_add_f32_dpp v28, v28, v28 {c} row_mask:0xf bank_mask:0xf")
        A("v_rcp_f32 v28, v28\ns_nop 0\nv_mul_f32 v126, v20, v28\nv_mul_f32 v127, v24, v28")
        A(f"s_lshl_b32 s68, s61, 16\ns_lshl_b32 s69, s63, 11\ns_add_u32 s68, s68, s69\ns_lshl_b32 s69, s64, 7\ns_add_u32 s68, s68, s69\ns_add_u32 s68, s68, {WS_HOP1}")
        A("v_lshlrev_b32 v12, 19, v14\nv_lshl_add_u32 v12, v15, 13, v12\nv_lshl_add_u32 v12, v2, 5, v12\nv_add_u32 v12, s68, v12")
        A("s_movk_i32 s77, 0x1000")
        A(f"s_mul_i32 s78, s2, 7168\ns_lshl_b32 s68, s60, 10\ns_add_u32 s78, s78, s68\ns_add_u32 s78, s78, {WS_HOP2}")
        A("v_lshrrev_b32 v13, 1, v2\nv_mul_u32_u24 v13, 3584, v13\nv_lshl_add_u32 v13, v1, 6, v13\nv_and_b32 v9, 1, v2\nv_lshl_add_u32 v13, v9, 5, v13")
        A("v_mov_b32 v49, s65\nv_mov_b32 v51, s65\nv_mov_b32 v53, s65\nv_mov_b32 v55, s65")
        A(f"s_mul_i32 s68, s60, {64*7168}\ns_lshl_b32 s69, s2, 6\ns_add_u32 s68, s68, s69\ns_add_u32 s68, s68, {WS_HOP2}")
        A("v_lshrrev_b32 v16, 2, v0\nv_mul_u32_u24 v16, 7168, v16\nv_and_b32 v9, 3, v0\nv_lshl_add_u32 v16, v9, 4, v16\nv_add_u32 v16, s68, v16")
        A(f"v_add_u32 v17, {16*7168}, v16\nv_add_u32 v18, {32*7168}, v16\nv_add_u32 v19, {48*7168}, v16")
        A("v_lshlrev_b32 v11, 2, v9\ns_lshl_b32 s79, s2, 4")
        A("buffer_load_dword v56, v11, s[40:43], s79 offen")
        self.srd(56, 22, 23, 1792)
        self.lds_spin(3, C_PUB, 4, 9, sleep=2)
        self.stamp(7)
        self.poll([(20, 12, 0, 0), (24, 12, 0, 16), (28, 12, "s77", 0), (32, 12, "s77", 16)], 44)
        self.stamp(8)
        A("v_mul_f32 v20, v126, v20\nv_mul_f32 v22, v126, v22\nv_mul_f32 v24, v126, v24\nv_mul_f32 v26, v126, v26")
        A("v_fmac_f32 v20, v127, v28\nv_fmac_f32 v22, v127, v30\nv_fmac_f32 v24, v127, v32\nv_fmac_f32 v26, v127, v34")
        for c in ("quad_perm:[1,0,3,2]", "quad_perm:[2,3,0,1]", "row_half_mirror"):
            for r in (20, 22, 24, 26):
                A(f"v_add_f32_dpp v{r}, v{r}, v{r} {c} row_mask:0xf bank_mask:0xf")
        for r in (20, 22, 24, 26):
            A(f"v_cvt_pk_bf16_f32 v{r}, v{r}, v{r}")
        self.ands(28, 20)
        self.ands(32, 22)
        self.mfma(120, 28, 96, 120)
        self.ands(36, 24)
        self.mfma(120, 32, 100, 120)
        self.ands(40, 26)
        self.mfma(120, 36, 104, 120)
        A("s_nop 1")
        self.mfma(120, 40, 108, 120)
        A("s_cmp_eq_u32 s60, 3\ns_cselect_b32 exec_lo, 0x00ff00ff, -1\ns_cselect_b32 exec_hi, 0x00ff00ff, -1")
        A("s_nop 5")
        A("v_mov_b32 v48, v120\nv_mov_b32 v50, v121\nv_mov_b32 v52, v122\nv_mov_b32 v54, v123")
        A("buffer_store_dwordx4 v[48:51], v13, s[36:39], s78 offen sc1")
        A("buffer_store_dwordx4 v[52:55], v13, s[36:39], s78 offen offset:16 sc1")
        A("s_mov_b64 exec, -1")
        self.stamp(9)
        A("s_cmp_ge_u32 s2, 112\ns_cbranch_scc1 L_fin")
        self.poll([(20, 16, 0, 0), (24, 17, 0, 0), (28, 18, 0, 0), (32, 19, 0, 0)], 44)
        A("v_add_f32 v20, v20, v24\nv_add_f32 v22, v22, v26\nv_add_f32 v28, v28, v32\nv_add_f32 v30, v30, v34")
        A("v_add_f32 v20, v20, v28\nv_add_f32 v22, v22, v30")
        for c in ("row_ror:4", "row_ror:8"):
            A(f"s_nop 0\nv_add_f32_dpp v20, v20, v20 {c} row_mask:0xf bank_mask:0xf")
            A(f"v_add_f32_dpp v22, v22, v22 {c} row_mask:0xf bank_mask:0xf")
        A("v_mov_b32 v21, v20\nv_mov_b32 v23, v22\ns_nop 0")
        A("v_permlane16_swap_b32 v20, v21\nv_permlane16_swap_b32 v22, v23\ns_nop 0")
        A("v_add_f32 v20, v20, v21\nv_add_f32 v22, v22, v23")
        A("v_mov_b32 v21, v20\nv_mov_b32 v23, v22\ns_nop 0")
        A("v_permlane32_swap_b32 v20, v21\nv_permlane32_swap_b32 v22, v23\ns_nop 0")
        A("v_add_f32 v20, v20, v21\nv_add_f32 v21, v22, v23")
        A(f"s_lshl_b32 s68, s60, 5\ns_add_u32 s68, s68, {L_FIN}")
        A("v_lshl_add_u32 v9, v0, 3, s68")
        A("s_mov_b64 exec, 15")
        A("ds_write_b64 v9, v[20:21]")
        self.lds_inc_rtn(3, C_FIN, 8, 10, 73)
        A("s_cmp_eq_u32 s73, 3\ns_cbranch_scc0 L_fin")
        A("s_mov_b64 exec, 15")
        A(f"v_lshlrev_b32 v9, 3, v0\nv_add_u32 v9, {L_FIN}, v9")
        for p in range(4):
            A(f"ds_read_b64 v[{20+2*p}:{21+2*p}], v9 offset:{p*32}")
        A("v_lshlrev_b32 v28, 16, v56\nv_and_b32 v29, 0xffff0000, v56")
        A("s_waitcnt lgkmcnt(0)")
        A("v_add_f32 v20, v20, v22\nv_add_f32 v21, v21, v23\nv_add_f32 v24, v24, v26\nv_add_f32 v25, v25, v27")
        A("v_add_f32 v20, v20, v24\nv_add_f32 v21, v21, v25\nv_add_f32 v20, v20, v28\nv_add_f32 v21, v21, v29")
        A("v_cvt_pk_bf16_f32 v20, v20, v21")
        A("buffer_store_dword v20, v11, s[56:59], s79 offen")
        A("s_cmp_lg_u32 s2, 0\ns_cbranch_scc1 L_fin")
        A("s_mov_b64 exec, 1\nv_mov_b32 v20, s65\nv_mov_b32 v21, 0")
        A("buffer_store_dword v20, v21, s[36:39], 0 offen")
        A("s_branch L_fin")
        A("L_stream:")
        A("s_setprio 1")
        A("s_sub_u32 s69, s60, 4")
        A("s_lshl_b32 s66, s63, 3\ns_add_u32 s66, s66, s61\ns_lshl_b32 s66, s66, 24")
        A("s_lshl_b32 s67, s64, 17\ns_add_u32 s66, s66, s67\ns_add_u32 s66, s66, 0xE00000")
        A("s_lshl_b32 s68, s62, 3")
        A("s_lshl_b32 s70, s69, 1")
        A("v_xor_b32 v10, s70, v0\nv_lshlrev_b32 v10, 4, v10\nv_xor_b32 v11, 16, v10")
        A("s_lshl_b32 s71, s69, 5")
        A("s_waitcnt lgkmcnt(0)")
        A("s_load_dword s65, s[26:27], 0")
        A("s_add_u32 s28, s6, s66\ns_addc_u32 s29, s7, 0")
        self.srd(28, None, None, 0x20000)
        A("s_add_u32 s32, s8, s66\ns_addc_u32 s33, s9, 0")
        self.srd(32, None, None, 0x20000)
        A("s_barrier")
        self.stamp(1)
        for q in range(4):
            A(f"s_add_u32 s72, s71, {8*q}\ns_lshl_b32 m0, s72, 9\ns_xor_b32 s72, s72, s68\ns_lshl_b32 s72, s72, 9")
            for i in range(4):
                A(f"buffer_load_dwordx4 v{10 if q < 2 else 11}, s[28:31], s72 offen offset:{i*1024} nt lds")
        self.stamp(2)
        self.masks()
        self.srd(36, 26, 27, WS_SIZE)
        A("s_lshr_b32 s67, s69, 2\ns_and_b32 s76, s69, 3")
        A("s_lshl_b32 s77, s67, 7\ns_lshl_b32 s78, s76, 7")
        A("v_lshrrev_b32 v12, 3, v0\nv_lshlrev_b32 v12, 4, v12\nv_add_u32 v12, s77, v12\nv_xor_b32 v12, s68, v12\nv_lshlrev_b32 v12, 9, v12")
        A("v_and_b32 v9, 7, v0\nv_lshl_add_u32 v12, v9, 4, v12\nv_add_u32 v12, s78, v12\nv_xor_b32 v13, 0x1000, v12")
        A("s_waitcnt vmcnt(0) lgkmcnt(0)")
        self.lds_inc(3, C_K, 8)
        A("s_setprio 0")
        self.stamp(3)
        for u in range(16):
            A(f"buffer_load_dwordx4 v[{64+4*u}:{67+4*u}], v{12 if u < 8 else 13}, s[32:35], 0 offen offset:{(u&7)*512} nt")
        self.stamp(4)
        A("s_add_u32 s65, s65, 1")
        A(f"s_lshl_b32 s70, s67, 9\ns_add_u32 s70, s70, {L_P}")
        A("v_bfe_u32 v14, v0, 3, 1\nv_lshlrev_b32 v14, 10, v14\nv_lshl_add_u32 v14, v2, 7, v14\nv_add_u32 v14, s70, v14")
        A(f"s_lshl_b32 s70, s76, 11\ns_add_u32 s70, s70, {L_OLD}")
        A("v_lshl_add_u32 v15, v0, 5, s70")
        A(f"s_lshl_b32 s79, s76, 2\nv_add_u32 v16, s79, v3")
        A(f"s_lshl_b32 s70, s63, 3\ns_add_u32 s70, s70, s61\ns_lshl_b32 s70, s70, 4\ns_add_u32 s70, s70, s64\ns_lshl_b32 s70, s70, 12")
        A(f"s_lshl_b32 s71, s76, 9\ns_add_u32 s70, s70, s71\ns_add_u32 s70, s70, {WS_HOP1}")
        A("v_lshrrev_b32 v17, 5, v0\nv_lshlrev_b32 v17, 11, v17\nv_lshl_add_u32 v17, v9, 6, v17")
        A("v_and_b32 v9, 1, v2\nv_lshl_add_u32 v17, v9, 5, v17\nv_bfe_u32 v9, v0, 3, 1\nv_lshl_add_u32 v17, v9, 4, v17")
        A("v_mov_b32 v61, s65\nv_mov_b32 v63, s65")
        self.lds_spin(3, C_P, 1, 9, sleep=2)
        for k in range(8):
            A(f"ds_read_b128 v[{128+4*k}:{131+4*k}], v14 offset:{k*16}")
        A("s_cmp_eq_u32 s67, 0\ns_cbranch_scc1 L_zero")
        self.lds_spin(16, C_OLD, 1, 9, sleep=2)
        A("ds_read_b128 v[48:51], v15\nds_read_b128 v[52:55], v15 offset:16")
        A("s_branch L_pv")
        A("L_zero:")
        for k in range(8):
            A(f"v_mov_b32 v{48+k}, 0")
        A("L_pv:")
        A("s_waitcnt lgkmcnt(0)")
        self.stamp(5)
        self.ands(20, 128)
        self.ands(24, 144)
        for u in range(16):
            A(f"s_waitcnt vmcnt({15-u})")
            self.mfma(48, 20, 64 + 4 * u, 48)
            if u < 15:
                self.ands(20, 128 + u + 1)
            self.mfma(52, 24, 64 + 4 * u, 52)
            if u < 15:
                self.ands(24, 144 + u + 1)
        self.stamp(6)
        A("s_cmp_eq_u32 s67, 0\ns_cbranch_scc0 L_pub")
        A("s_nop 6")
        A("ds_write_b128 v15, v[48:51]\nds_write_b128 v15, v[52:55] offset:16")
        self.lds_inc(16, C_OLD, 8)
        A("s_branch L_fin")
        A("L_pub:")
        A("s_nop 6")
        A("v_add_f32_dpp v60, v52, v48 row_ror:8 row_mask:0xf bank_mask:0x3")
        A("v_add_f32_dpp v62, v53, v49 row_ror:8 row_mask:0xf bank_mask:0x3")
        A("v_add_f32_dpp v60, v50, v54 row_ror:8 row_mask:0xf bank_mask:0xc")
        A("v_add_f32_dpp v62, v51, v55 row_ror:8 row_mask:0xf bank_mask:0xc")
        A("buffer_store_dwordx4 v[60:63], v17, s[36:39], s70 offen sc1")
        self.lds_inc(3, C_PUB, 8)
        A("L_fin:")
        if self.stamps:
            self.stamp(10)
            A("s_mov_b64 exec, -1")
            A("s_waitcnt lgkmcnt(0)")
            A("s_add_u32 s26, s26, 0x20000000\ns_addc_u32 s27, s27, 0")
            A("s_mul_i32 s72, s2, 12\ns_add_u32 s72, s72, s60\ns_mul_i32 s72, s72, 88")
            A("v_mov_b32 v1, s72")
            for i in range(11):
                j = i
                A(f"v_mov_b32 v4, s{80+2*j}\nv_mov_b32 v5, s{81+2*j}")
                A(f"global_store_dwordx2 v1, v[4:5], s[26:27] offset:{i*8}\ns_nop 1")
        A("L_end:")
        A("s_endpgm")

    def text(self):
        self.build()
        out = HDR
        out += f"; @launch grid=(256,1,1) block=(768,1,1) lds={LDS_SIZE}\n"
        out += '.amdgcn_target "amdgcn-amd-amdhsa--gfx950"\n.text\n'
        out += f".globl {KN}_kernel\n.p2align 8\n.type {KN}_kernel,@function\n"
        out += "\n".join(self.L) + "\n"
        out += f""".section .rodata,"a"
.p2align 6
.amdhsa_kernel {KN}_kernel
  .amdhsa_next_free_vgpr 160
  .amdhsa_next_free_sgpr 102
  .amdhsa_accum_offset 160
  .amdhsa_group_segment_fixed_size 0
  .amdhsa_kernarg_size 96
  .amdhsa_user_sgpr_count 2
  .amdhsa_user_sgpr_kernarg_segment_ptr 1
  .amdhsa_system_sgpr_workgroup_id_x 1
  .amdhsa_float_denorm_mode_32 3
.end_amdhsa_kernel
"""
        return out


if __name__ == "__main__":
    stamps = "--stamps" in sys.argv
    out = [a for a in sys.argv[1:] if not a.startswith("--")][0]
    open(out, "w").write(Gen(stamps).text())
```
